```python
import torch

def _softmax(x, axis=-1):
    return torch.softmax(x, dim=axis)
def _gelu(x):
    return torch.nn.functional.gelu(x, approximate="tanh")
def _silu(x):
    return torch.nn.functional.silu(x)
def _sigmoid(x):
    return torch.sigmoid(x)
def _layernorm(x, axis=-1, eps=1e-5):
    m = x.mean(dim=axis, keepdim=True)
    v = x.var(dim=axis, keepdim=True, unbiased=False)
    return (x - m) / torch.sqrt(v + eps)
def _scatter_add(tgt, idx, src, axis=0):
    return tgt.clone().index_add_(axis, idx, src)
def _segment_sum(src, seg, n):
    out = torch.zeros((n,) + src.shape[1:], dtype=src.dtype)
    return out.index_add_(0, seg, src)
def _pad(x, pw):
    flat = tuple(v for pair in reversed(pw) for v in pair)
    return torch.nn.functional.pad(x, flat)

kernel_name = 'gated_mix__ssm_conv_s4d__mixer_channel_mlp__prompt'

def setup_inputs():

    _w = (lambda a: (lambda t: t.to(torch.bfloat16) if t.is_floating_point() else t)(torch.as_tensor(a)))
    def _A_setup():
        Bsz, L, D, N = 1, 2048, 512, 128
        return {
            "u": _w((lambda *s: torch.randn(*s, dtype=torch.bfloat16) * 0.05)(Bsz, L, D)),
            "log_A_real": _w((lambda *s: torch.randn(*s, dtype=torch.bfloat16) * 3.2)(D, N) * 0.5),
            "A_imag": _w((lambda *s: torch.randn(*s, dtype=torch.bfloat16) * 0.1)(D, N) * 3.14),
            "C_real": _w((lambda *s: torch.randn(*s, dtype=torch.bfloat16) * 0.8)(D, N) / N ** 0.5),
            "C_imag": _w((lambda *s: torch.randn(*s, dtype=torch.bfloat16) * 0.8)(D, N) / N ** 0.5),
            "log_dt": _w((lambda *s: torch.randn(*s, dtype=torch.bfloat16) * 0.1)(D) * 0.5 - 4.0),
            "D_skip": _w((lambda *s: torch.randn(*s, dtype=torch.bfloat16) * 0.1)(D)),
        }
    _A_in = _A_setup()

    def _B_setup():
        B, S, D, F = 1, 2048, 512, 1792
        return {
            "x": _w((lambda *s: torch.randn(*s, dtype=torch.bfloat16) * 0.05)(B, S, D)),
            "w1": _w((lambda *s: torch.randn(*s, dtype=torch.bfloat16) * 0.8)(D, F) * (D ** -0.5)),
            "b1": _w((lambda *s: torch.randn(*s, dtype=torch.bfloat16) * 0.4)(F)),
            "w2": _w((lambda *s: torch.randn(*s, dtype=torch.bfloat16) * 0.05)(F, D) * (F ** -0.5)),
            "b2": _w((lambda *s: torch.randn(*s, dtype=torch.bfloat16) * 0.05)(D)),
        }
    _B_in = _B_setup()

    return {
        "A_u": _A_in["u"],
        "A_log_A_real": _A_in["log_A_real"],
        "A_A_imag": _A_in["A_imag"],
        "A_C_real": _A_in["C_real"],
        "A_C_imag": _A_in["C_imag"],
        "A_log_dt": _A_in["log_dt"],
        "A_D_skip": _A_in["D_skip"],
        "B_x": _B_in["x"],
        "B_w1": _B_in["w1"],
        "B_b1": _B_in["b1"],
        "B_w2": _B_in["w2"],
        "B_b2": _B_in["b2"],
        "gate_w": _w((lambda *s: torch.randn(*s, dtype=torch.bfloat16) * 0.05)(512) * 16.0),
    }

def reference(A_u, A_log_A_real, A_A_imag, A_C_real, A_C_imag, A_log_dt, A_D_skip, B_x, B_w1, B_b1, B_w2, B_b2, gate_w):
    def _A_ref(u, log_A_real, A_imag, C_real, C_imag, log_dt, D_skip):
        L = u.shape[1]
        dt = torch.exp(log_dt)
        A = -torch.exp(log_A_real) + 1j * A_imag
        C = (C_real + 1j * C_imag) * dt[:, None]
        pos = (lambda x, dt: x.to(dt))(torch.arange(L), log_dt.dtype)
        P = torch.exp((A * dt[:, None])[:, :, None] * pos[None, None, :])
        K = 2.0 * torch.einsum("dn,dnl->dl", C, P).real
        L2 = 2 * L
        u_t = (lambda x, *d: x.permute(*d))(u, 0, 2, 1)
        Kf = (lambda x, *a, **k: torch.fft.rfft(x.float(), *a, **k))(K, L2)
        Uf = (lambda x, *a, **k: torch.fft.rfft(x.float(), *a, **k))(u_t, L2)
        y = (lambda x, *a, **k: torch.fft.irfft(x, *a, **k).to(torch.bfloat16))(Uf * Kf[None, :, :], L2)[:, :, :L]
        y = (lambda x, *d: x.permute(*d))(y, 0, 2, 1)
        return y + u * D_skip[None, None, :]

    def _B_ref(x, w1, b1, w2, b2):
        y = _layernorm(x, axis=-1)
        h = _gelu(torch.einsum("bsd,df->bsf", y, w1) + b1)
        return torch.einsum("bsf,fd->bsd", h, w2) + b2

    x = A_u
    g = _sigmoid((x * gate_w).sum(-1, keepdims=True))
    a = _A_ref(x, A_log_A_real, A_A_imag, A_C_real, A_C_imag, A_log_dt, A_D_skip)
    b = _B_ref(x, B_w1, B_b1, B_w2, B_b2)
    return g * a + (1 - g) * b
```

```python
import re, subprocess, os

TRANS = ('v_exp_f32', 'v_log_f32', 'v_rcp_f32', 'v_rsq_f32', 'v_sqrt_f32', 'v_sin_f32', 'v_cos_f32')

def _regs(op):
    op = op.strip()
    neg = op.lstrip('-')
    m = re.fullmatch(r'(?:abs\()?\|?([vas])\[(\d+):(\d+)\]\|?\)?', neg)
    if m: return [f"{m.group(1)}{i}" for i in range(int(m.group(2)), int(m.group(3)) + 1)]
    m = re.fullmatch(r'(?:abs\()?\|?([vas])(\d+)\|?\)?', neg)
    if m: return [f"{m.group(1)}{m.group(2)}"]
    if neg in ('vcc', 'exec', 'm0'): return [neg]
    if neg in ('vcc_lo', 'vcc_hi'): return ['vcc']
    if neg in ('exec_lo', 'exec_hi'): return ['exec']
    return []

class Ins:
    def __init__(self, text, tok=None):
        self.text = text.strip(); self.tok = tok
        t = self.text
        self.mn = t.split()[0]
        rest = t[len(self.mn):].strip()
        ops, depth, cur = [], 0, ''
        for ch in rest:
            if ch in '[(': depth += 1
            if ch in '])': depth -= 1
            if ch == ',' and depth == 0: ops.append(cur.strip()); cur = ''
            else: cur += ch
        if cur.strip(): ops.append(cur.strip())
        mods = ''
        if ops:
            parts = ops[-1].split(None, 1)
            ops[-1] = parts[0]
            if len(parts) > 1: mods = parts[1]
        self.ops, self.mods = ops, mods
        mn = re.sub(r'_(e32|e64|dpp|sdwa)$', '', self.mn)
        self.base = mn
        R = [_regs(o) for o in ops]
        self.wr, self.rd = [], []
        self.kind = 'other'
        self.srcc = []
        if mn.startswith('v_mfma'):
            self.kind = 'mfma'; self.wr = R[0]; self.rd = R[1] + R[2] + R[3]; self.ab = R[1] + R[2]; self.srcc = R[3]
            self.passes = 8 if '32x32' in mn else 4
        elif mn.startswith('v_'):
            self.kind = 'valu'
            self.wr = list(R[0]); self.rd = sum(R[1:], [])
            if mn.startswith(('v_fmac', 'v_dot2c', 'v_pk_fmac')): self.rd += R[0]
            if mn.startswith('v_permlane') and 'swap' in mn: self.wr += R[1]; self.rd += R[0]
            if mn.startswith(('v_add_co', 'v_sub_co', 'v_addc_co')): self.wr += R[1]
            if self.mn.endswith('_dpp') or 'row_' in mods or 'quad_perm' in mods: self.rd += R[0]; self.dpp = True
        elif mn.startswith('ds_'):
            self.kind = 'ds'
            if mn.startswith(('ds_read', 'ds_bpermute', 'ds_permute', 'ds_swizzle')): self.wr = R[0]; self.rd = sum(R[1:], [])
            else: self.rd = sum(R, [])
        elif mn.startswith('buffer_') or mn.startswith('global_'):
            self.kind = 'vm'
            lds = ' lds' in (' ' + mods)
            self.lds = lds
            if 'load' in mn and not lds: self.wr = R[0]; self.rd = sum(R[1:], [])
            else: self.rd = sum(R, [])
            if lds: self.rd = self.rd + ['m0']
            self.store_data = []
            if 'store' in mn and ('x4' in mn or 'x3' in mn):
                self.store_data = R[0] if mn.startswith('buffer_') else R[1]
        elif mn.startswith('s_'):
            self.kind = 'salu'
            if mn.startswith(('s_cmp', 's_cbranch', 's_branch', 's_waitcnt', 's_nop', 's_barrier', 's_endpgm', 's_sleep', 's_setprio', 's_bitcmp')):
                self.rd = sum(R, [])
            else:
                self.wr = list(R[0]) if R else []; self.rd = sum(R[1:], [])
                if 'saveexec' in mn: self.wr.append('exec')
    def states(self):
        if self.base == 's_nop': return int(self.ops[0], 0) + 1
        return 1

class Wait:
    def __init__(self, vm=None, lg=None): self.vm = vm; self.lg = lg; self.nvm = None; self.nlg = None
class Label:
    def __init__(self, name): self.name = name
class Raw:
    def __init__(self, text): self.text = text

class Seg:
    def __init__(self, name): self.name = name; self.items = []
    def __call__(self, text, tok=None):
        for line in text.strip().split('\n'):
            line = line.split(';')[0].strip()
            if not line: continue
            if line.endswith(':'): self.items.append(Label(line[:-1]))
            elif line.startswith('.'): self.items.append(Raw(line))
            else: self.items.append(Ins(line, tok))
    def wait(self, vm=None, lg=None): self.items.append(Wait(vm, lg))
    def ext(self, other): self.items += other.items if isinstance(other, Seg) else other

def resolve_waits(paths):
    for path in paths:
        vm_list, lg_list = [], []
        vm_done, lg_done = 0, 0
        for seg in path:
            for it in seg.items:
                if isinstance(it, Ins):
                    if it.kind == 'vm': vm_list.append(it.tok)
                    elif it.kind == 'ds': lg_list.append(it.tok)
                    elif it.base == 's_waitcnt':
                        m = re.search(r'vmcnt\((\d+)\)', it.text)
                        if m: vm_done = max(vm_done, len(vm_list) - int(m.group(1)))
                        m = re.search(r'lgkmcnt\((\d+)\)', it.text)
                        if m: lg_done = max(lg_done, len(lg_list) - int(m.group(1)))
                elif isinstance(it, Wait):
                    for which, lst, cap in (('vm', vm_list, 62), ('lg', lg_list, 14)):
                        tok = getattr(it, which)
                        if tok is None: continue
                        toks = tok if isinstance(tok, (list, tuple)) else [tok]
                        need = 0
                        for tk in toks:
                            if tk == 0: need = len(lst)
                            else:
                                idx = [i for i, t in enumerate(lst) if t == tk]
                                if idx: need = max(need, idx[-1] + 1); it.__dict__.setdefault('seen', set()).add(tk)
                        done = vm_done if which == 'vm' else lg_done
                        if need > done:
                            n = min(cap, len(lst) - need)
                            cur = getattr(it, 'n' + which)
                            setattr(it, 'n' + which, n if cur is None else min(cur, n))
                            if which == 'vm': vm_done = len(lst) - n
                            else: lg_done = len(lst) - n
    segs = []
    for path in paths:
        for s in path:
            if s not in segs: segs.append(s)
    for s in segs:
        out = []
        for it in s.items:
            if isinstance(it, Wait):
                for which in ('vm', 'lg'):
                    tok = getattr(it, which)
                    toks = tok if isinstance(tok, (list, tuple)) else [tok]
                    for tk in toks:
                        if tk not in (None, 0) and tk not in it.__dict__.get('seen', set()):
                            raise Exception(f"wait on unknown token {tk} in {s.name}")
                parts = []
                if it.nvm is not None: parts.append(f"vmcnt({it.nvm})")
                if it.nlg is not None: parts.append(f"lgkmcnt({it.nlg})")
                if parts: out.append(Ins("s_waitcnt " + " ".join(parts)))
            else: out.append(it)
        s.items = out

def need_states(p, c):
    n = 0
    pw, cr, cw = set(p.wr), set(c.rd), set(c.wr)
    vw = {r for r in pw if r[0] in 'va' and r != 'vcc'}
    sw = {r for r in pw if r[0] == 's' or r == 'vcc'}
    if p.kind == 'valu':
        if c.kind == 'mfma' and vw & cr: n = max(n, 2)
        if c.kind == 'valu':
            if p.base in TRANS and vw & cr: n = max(n, 1)
            if (c.base.startswith('v_permlane') or getattr(c, 'dpp', False)) and vw & cr: n = max(n, 2)
            if c.base.startswith(('v_readlane', 'v_readfirstlane')) and vw & cr: n = max(n, 1)
            rd = cr | ({'vcc'} if c.base.startswith(('v_cndmask', 'v_addc')) and len(c.ops) < 4 else set())
            if sw & rd: n = max(n, 4 if c.base.startswith(('v_readlane', 'v_writelane')) else 2)
            if 'sdwa' in p.mn and vw & (cr | cw): n = max(n, 1)
        if p.base.startswith('v_dot2') and c.kind != 'salu' and vw & (cr | cw) and p.base != c.base: n = max(n, 3)
        if c.kind == 'vm' and sw & cr: n = max(n, 5)
        if c.kind == 'salu' and sw & cr: n = max(n, 1)
    if p.kind == 'mfma':
        far = p.passes + 4
        if c.kind == 'mfma':
            if vw & set(c.ab): n = max(n, far)
            if vw & set(c.srcc):
                if not (c.srcc == p.wr and c.passes == p.passes): n = max(n, p.passes + 2)
            elif vw & cw: n = max(n, p.passes + 2)
        elif c.kind in ('valu', 'ds', 'vm'):
            if vw & (cr | cw): n = max(n, far)
            if c.kind == 'valu' and set(p.srcc) & cw: n = max(n, p.passes - 1)
    if p.kind == 'salu' and 'm0' in pw and c.kind == 'vm' and c.lds: n = max(n, 1)
    if p.kind == 'vm' and p.store_data and set(p.store_data) & cw: n = max(n, 2)
    return n

def fix_hazards(paths):
    changed = True
    while changed:
        changed = False
        for path in paths:
            hist = []
            pos = 0
            for seg in path:
                i = 0
                while i < len(seg.items):
                    it = seg.items[i]
                    if isinstance(it, Ins):
                        short = 0
                        for p, ppos in hist[-24:]:
                            gap = pos - ppos - p.states()
                            need = need_states(p, it)
                            if need > gap: short = max(short, need - gap)
                        if short:
                            nop = Ins(f"s_nop {short-1}")
                            seg.items.insert(i, nop); changed = True
                            hist.append((nop, pos)); pos += nop.states(); i += 1
                        hist.append((it, pos)); pos += it.states()
                    i += 1

_size_cache = {}
def sizes(instrs):
    todo = [t for t in dict.fromkeys(instrs) if t not in _size_cache]
    if todo:
        src = '.amdgcn_target "amdgcn-amd-amdhsa--gfx950"\n.text\n' + '\n'.join(
            (re.sub(r'(s_c?branch\w*)\s+\S+', r'\1 0', t)) for t in todo) + '\n'
        r = subprocess.run(['llvm-mc', '-triple', 'amdgcn-amd-amdhsa', '-mcpu=gfx950', '-show-encoding'], input=src, capture_output=True, text=True)
        if r.returncode: raise Exception(r.stderr[:3000])
        enc = re.findall(r'^\s*(\S+).*encoding: \[(.*)\]', r.stdout, re.M)
        assert len(enc) == len(todo), (len(enc), len(todo))
        for t, (mn, e) in zip(todo, enc): _size_cache[t] = (len(e.split(',')), mn)
    return [_size_cache[t] for t in instrs]

def align8(segs):
    items = [it for s in segs for it in s.items]
    ins = [it for it in items if isinstance(it, Ins)]
    sz = sizes([it.text for it in ins])
    info = {id(it): s for it, s in zip(ins, sz)}
    def promotable(it):
        n, mn = info[id(it)]
        return n == 4 and mn.endswith('_e32') and it.kind == 'valu' and not it.mn.endswith('_e32') and not it.base.startswith(('v_permlane', 'v_readfirstlane', 'v_accvgpr', 'v_fmac', 'v_cndmask', 'v_cmp'))
    pos = 0
    for k, it in enumerate(items):
        if isinstance(it, Raw):
            m = re.match(r'\.p2align\s+(\d+)', it.text)
            if m: pos = 0
            continue
        if not isinstance(it, Ins): continue
        n, mn = info[id(it)]
        if n == 4 and pos % 8 == 0 and promotable(it):
            nxt = next((x for x in items[k+1:] if isinstance(x, Ins)), None)
            if nxt is not None and info[id(nxt)][0] != 4:
                it.text = it.mn + '_e64' + it.text[len(it.mn):]; n = 8
        pos += n

def render(segs):
    out = []
    for s in segs:
        out.append(f"; ---- {s.name}")
        for it in s.items:
            if isinstance(it, Label): out.append(it.name + ':')
            elif isinstance(it, Raw): out.append(it.text)
            else: out.append('    ' + it.text)
    return '\n'.join(out)

def interleave(main, fill, start=0, per=None):
    out = []
    n = len(main) - start
    k = 0
    for i, mitem in enumerate(main):
        out += mitem
        if i >= start:
            tgt = len(fill) * (i - start + 1) // n if per is None else min(len(fill), per * (i - start + 1))
            while k < tgt: out += fill[k]; k += 1
    while k < len(fill): out += fill[k]; k += 1
    return out
```

```python
import sys, math
from asmlib import *

NAME = 'gated_mix__ssm_conv_s4d__mixer_channel_mlp__prompt'
class Cfg:
    diag = False
    prefetch_code = True
cfg = Cfg()
for a in sys.argv[2:]:
    k, v = a.split('='); setattr(cfg, k, eval(v))

WS_H   = 0
WS_UT  = 8 << 20
WS_A2  = 10 << 20
WS_RT  = 12 << 20
WS_RF  = WS_RT + 0x8000
WS_G   = WS_RT + 0x10000
WS_FH  = WS_RT + 0x14000
WS_FA  = WS_RT + 0x18000
WS_FU  = WS_RT + 0x1C000
WS_DG  = 16 << 20
WS_SZ  = 1 << 28
STG = 0
XR, WR = 49152, 98304
TB, TBS, TROW = 49152, 33264, 528
UL = 115712
KL = 149056
EX = 49152
P1 = 81920
A2L = UL
SSLAB, SX, SG = 0, 65536, 133120
LDS_SZ = 163840
pU, pLA, pAI, pCR, pCI, pDT, pDS, pW1, pB1, pW2, pB2, pGW, pOUT, pDBG, pWS = 4, 6, 8, 10, 12, 14, 16, 20, 22, 24, 26, 28, 30, 32, 34
rX, rW1, rW2, rWS, rOUT = 36, 40, 44, 48, 52
sW, sXCD, sIDX, sTBL, sFCL = 56, 57, 58, 59, 60
sT0, sT1, sT2, sT3 = 61, 62, 63, 3
sM = 64
sB2 = 72
sSTG = 73
sG = 74
sA, sB, sC, sD, sE, sF = 88, 89, 90, 91, 92, 93
sCNT = 94
sT64, sDB = 95, 18
sSTAMP = 96
def sr(b, n=2): return f"s[{b}:{b+n-1}]"
def vr(b, n): return f"v[{b}:{b+n-1}]" if n > 1 else f"v{b}"
def ar(b, n): return f"a[{b}:{b+n-1}]"
vL, vL16, vN, vT = 0, 1, 2, 3
vP = 4
vO2 = 10
vA2 = 14
vDG = 255

slow = Seg('slow paths')
stamps = []
def stamp(s, name):
    if not cfg.diag: return
    if name not in stamps: stamps.append(name)
    k = stamps.index(name)
    s(f"s_memtime {sr(sSTAMP)}\ns_waitcnt lgkmcnt(0)\ns_sub_u32 s{sSTAMP}, s{sSTAMP}, s98\nv_mov_b32 v{vDG}, s{sSTAMP}\nv_accvgpr_write_b32 a{224+k}, v{vDG}")

def poll(s, name, loads, checks, tok):
    def chk(t):
        for i, (op, a, b) in enumerate(checks):
            t(f"v_cmp_{op}_u32 {sr(sM + 2*(i > 0))}, {a}, {b}")
            if i > 0: t(f"s_or_b64 {sr(sM)}, {sr(sM)}, {sr(sM+2)}")
        if len(checks) == 1: t(f"s_or_b64 {sr(sM)}, {sr(sM)}, {sr(sM)}")
    s.wait(vm=tok)
    chk(s)
    s(f"s_cbranch_scc1 SLOW_{name}\nBACK_{name}:")
    slow(f"SLOW_{name}:\ns_mov_b32 s{sCNT}, 0x20000\nLOOP_{name}:\ns_sub_u32 s{sCNT}, s{sCNT}, 1\ns_cbranch_scc1 BACK_{name}")
    slow(loads)
    slow("s_waitcnt vmcnt(0)")
    chk(slow)
    slow(f"s_cbranch_scc1 LOOP_{name}\ns_branch BACK_{name}")

def w2_issue(g):
    t = Seg('t')
    t(f"s_add_u32 m0, s{sSTG}, {4096*(g%3)}\ns_lshl4_add_u32 s{sT3}, s{sG+g}, s{sB2}")
    for j in range(4):
        t(f"buffer_load_dwordx4 v{vO2+j}, {sr(rW2,4)}, s{sT3} offen offset:{1024*j} lds", tok=f"w2g{g}")
    return [[t.items[0], t.items[1], t.items[2]], [t.items[3]], [t.items[4]], [t.items[5]]]
def w2_read(g):
    out = []
    for e in range(2):
        for i in range(2):
            for jj in range(2):
                it = Ins(f"ds_read_b64_tr_b16 {ar((2*g+e)*8+4*i+2*jj, 2)}, v{vA2+i} offset:{4096*(g%3)+2048*e+1024*jj}", f"w2r{g}")
                out.append([it])
    out[0] = [Wait(vm=f"w2g{g}")] + out[0]
    return out
def w2_pump(g):
    out = w2_read(g)
    if g + 3 < 14:
        iss = w2_issue(g + 3)
        iss[0] = [Wait(lg=f"w2r{g}")] + iss[0]
        out += iss
    return out
def flat(groups): return [x for g in groups for x in g]

pro = Seg('prologue')
pro(f"""
s_cmp_ge_u32 s2, 256
s_cbranch_scc1 L_END
s_load_dwordx16 s[4:19], s[0:1], 0
s_load_dwordx16 s[20:35], s[0:1], 64
s_memrealtime {sr(sA)}
""")
if cfg.diag: pro("s_memtime s[98:99]\ns_memrealtime s[100:101]")
if cfg.prefetch_code:
    pro(f"""
s_getpc_b64 {sr(sC)}
v_lshlrev_b32 v{vT}, 7, v0
global_load_dword v250, v{vT}, {sr(sC)}
""")
pro(f"""
v_lshrrev_b32 v{vT}, 6, v0
v_and_b32 v{vL}, 63, v0
v_readfirstlane_b32 s{sW}, v{vT}
v_lshlrev_b32 v{vL16}, 4, v{vL}
s_and_b32 s{sXCD}, s2, 7
s_lshr_b32 s{sIDX}, s2, 3
s_and_b32 s{sTBL}, s{sIDX}, 3
s_lshr_b32 s{sFCL}, s{sIDX}, 2
s_lshl2_add_u32 s{sT64}, s{sXCD}, s{sTBL}
s_mul_i32 s{sSTG}, s{sW}, 12288
s_mul_i32 s{sB2}, s{sW}, {448*1024}
s_lshl_b32 s{sT0}, s{sFCL}, 7
s_add_u32 s{sB2}, s{sB2}, s{sT0}
""")
for g in range(14): pro(f"s_mov_b32 s{sG+g}, {2048*g}")
pro(f"""
s_lshl_b32 s{sT0}, s2, 9
s_lshl_b32 s{sT1}, s{sW}, 7
s_add_u32 s{sT0}, s{sT0}, s{sT1}
v_lshl_add_u32 v17, v{vL}, 1, s{sT0}
s_lshr_b32 s{sT0}, s{sT0}, 8
s_lshl_b32 s{sT0}, s{sT0}, 1
v_mov_b32 v18, s{sT0}
v_lshrrev_b32 v19, 3, v{vL}          ; g
v_and_b32 v20, 7, v{vL}
v_bfe_u32 v21, v{vL}, 4, 1
v_lshlrev_b32 v21, 2, v21
v_xor_b32 v21, v21, v20
v_lshlrev_b32 v21, 4, v21
v_lshl_add_u32 v{vO2}, v19, 10, v21
v_add_u32 v{vO2+1}, 7168, v{vO2}
v_add_u32 v{vO2+2}, {2*7168}, v{vO2}
v_add_u32 v{vO2+3}, {3*7168}, v{vO2}
v_bfe_u32 v19, v{vL}, 2, 2           ; r
v_lshrrev_b32 v20, 5, v{vL}          ; kg
v_lshl_add_u32 v20, v20, 2, v19
v_lshlrev_b32 v20, 7, v20            ; (4kg+r)*128
v_bfe_u32 v21, v{vL}, 4, 1
v_lshl_add_u32 v20, v21, 5, v20      ; + 32*(G&1)
v_and_b32 v21, 3, v{vL}
v_lshl_add_u32 v20, v21, 3, v20      ; + 8*c
v_lshrrev_b32 v19, 1, v19
v_lshl_add_u32 v20, v19, 6, v20      ; + 64*(r>>1)
v_add_u32 v{vA2}, s{sSTG}, v20
v_xor_b32 v{vA2+1}, 64, v{vA2}
s_waitcnt lgkmcnt(0)
""")
for r, p, sz in ((rX, pU, 2097152), (rW1, pW1, 1835008), (rW2, pW2, 1835008), (rWS, pWS, WS_SZ), (rOUT, pOUT, 2097152)):
    pro(f"s_mov_b32 s{r}, s{p}\ns_mov_b32 s{r+1}, s{p+1}\ns_mov_b32 s{r+2}, {sz}\ns_mov_b32 s{r+3}, 0x20000")
pro(f"s_mov_b32 s{sDB}, s{sFCL}")
pro(f"""
s_or_b32 s{sT0}, s2, s{sW}
s_cbranch_scc1 L_NONONCE
s_or_b32 s{sA}, s{sA}, 0x80000000
v_mov_b32 v19, s{sA}
v_mov_b32 v20, 0
global_store_dword v20, v19, {sr(pDBG)} sc1
L_NONONCE:
""")
NONCE_LD = f"v_mov_b32 v{vT}, 0\nglobal_load_dword v{vN}, v{vT}, {sr(pDBG)} sc1"
def param_loads(s):
    for k, p in enumerate((pLA, pAI, pCR, pCI)): s(f"global_load_ushort v{vP+k}, v17, {sr(p)}", tok='par')
    s(f"global_load_ushort v{vP+4}, v18, {sr(pDT)}\nglobal_load_ushort v{vP+5}, v18, {sr(pDS)}", tok='par')
param_loads(pro)
pro(f"s_cmp_eq_u32 s{sFCL}, 7\ns_cbranch_scc1 L_SERVICE")

g1 = Seg('G1')
vOX, vOW, vAB, vAA = 16, 20, 24, 28
vACC = 32
vF = 96
vRF, vRT = 128, 136
sXO, sWO, sMX, sHO, sTB, sFC = sA, sB, sC, sD, sE, sF
g1(f"""
s_lshr_b32 s{sT0}, s{sXCD}, 1
s_lshl2_add_u32 s{sTB}, s{sT0}, s{sTBL}      ; tb
s_and_b32 s{sT0}, s{sXCD}, 1
s_mul_i32 s{sT0}, s{sT0}, 7
s_add_u32 s{sFC}, s{sT0}, s{sFCL}            ; fc
s_lshl2_add_u32 s{sXO}, s{sTB}, s{sW}
s_lshl_b32 s{sXO}, s{sXO}, 15                ; (128tb+32w)*1024
s_mul_i32 s{sWO}, s{sW}, {16*3584}
s_lshl_b32 s{sT0}, s{sFC}, 8
s_add_u32 s{sWO}, s{sWO}, s{sT0}
s_lshl_b32 s{sMX}, s{sW}, 12
v_lshrrev_b32 v30, 3, v{vL}                  ; g
v_and_b32 v31, 7, v{vL}
v_lshrrev_b32 v{vT}, 4, v{vL}                ; g>>1 = r
v_xor_b32 v31, v31, v{vT}
v_lshlrev_b32 v31, 4, v31
v_lshl_add_u32 v{vOX}, v30, 10, v31
v_xor_b32 v{vOX+1}, 64, v{vOX}
v_add_u32 v{vOX+2}, {2*7168}, v{vOX}
v_add_u32 v{vOX+3}, {3*7168}, v{vOX+1}
v_add_u32 v{vOX+1}, 7168, v{vOX+1}
v_and_b32 v31, 15, v{vL}
v_lshlrev_b32 v30, 2, v{vT}
v_xor_b32 v31, v31, v30
v_lshlrev_b32 v31, 4, v31
v_mul_u32_u24 v30, 3584, v{vT}
v_add_u32 v{vOW}, v30, v31
v_add_u32 v{vOW+1}, 13312, v{vOW}
v_add_u32 v{vOW+2}, {2*13312}, v{vOW}
v_add_u32 v{vOW+3}, {3*13312}, v{vOW}
""")
def g1_issue(st):
    t = Seg('t'); sl = st % 3
    t(f"s_add_u32 m0, s{sMX}, {XR + 16384*sl}\ns_add_u32 s{sT3}, s{sXO}, {128*st}")
    for j in range(4): t(f"buffer_load_dwordx4 v{vOX+j}, {sr(rX,4)}, s{sT3} offen offset:{1024*j} lds", tok=f"st{st}")
    t(f"s_add_u32 m0, s{sMX}, {WR + 16384*sl}\ns_add_u32 s{sT3}, s{sWO}, {64*3584*st}")
    for j in range(4): t(f"buffer_load_dwordx4 v{vOW+j}, {sr(rW1,4)}, s{sT3} offen offset:{1024*j} lds", tok=f"st{st}")
    x = t.items
    return [x[0:3], [x[3]], [x[4]], [x[5]], x[6:9], [x[9]], [x[10]], [x[11]]]
g1.ext(flat(g1_issue(0)))
g1(f"""
s_lshr_b32 s{sT0}, s{sW}, 1                  ; wt
s_and_b32 s{sT1}, s{sW}, 1                   ; wf
s_lshl_b32 s{sT2}, s{sT0}, 13
s_add_u32 s{sT2}, s{sT2}, {XR}
v_and_b32 v30, 31, v{vL}
v_bfe_u32 v31, v{vL}, 1, 3
v_lshrrev_b32 v{vT}, 5, v{vL}                ; kg
v_xor_b32 v31, v31, v{vT}
v_lshlrev_b32 v31, 4, v31
v_lshl_add_u32 v31, v30, 7, v31
v_add_u32 v{vAB}, s{sT2}, v31
v_xor_b32 v{vAB+1}, 32, v{vAB}
v_xor_b32 v{vAB+2}, 64, v{vAB}
v_xor_b32 v{vAB+3}, 96, v{vAB}
v_bfe_u32 v30, v{vL}, 2, 2                   ; r
v_lshl_add_u32 v31, v{vT}, 3, v30
v_lshlrev_b32 v31, 8, v31                    ; (8kg+r)*256
s_lshl_b32 s{sT2}, s{sT1}, 7
v_lshlrev_b32 v30, 6, v30
v_xor_b32 v30, s{sT2}, v30                   ; (128wf) ^ (64r)
v_add_u32 v31, v31, v30
v_bfe_u32 v30, v{vL}, 4, 1
v_lshl_add_u32 v31, v30, 5, v31
v_and_b32 v30, 3, v{vL}
v_lshl_add_u32 v31, v30, 3, v31
v_add_u32 v{vAA}, {WR}, v31
v_xor_b32 v{vAA+1}, 64, v{vAA}
""")
g1.ext(flat(g1_issue(1)))
g1(f"""
s_lshl1_add_u32 s{sT2}, s{sFC}, s{sT1}       ; f64
s_lshl1_add_u32 s{sT0}, s{sTB}, s{sT0}       ; tok64
v_and_b32 v31, 31, v{vL}
v_lshlrev_b32 v31, 4, v31
v_lshl_add_u32 v30, v{vT}, 31, v31
s_lshl_b32 s{sT1}, s{sT2}, 10
s_add_u32 s{sT1}, s{sT1}, {WS_RF}
v_add_u32 v30, s{sT1}, v30
s_lshl_b32 s{sT1}, s{sT0}, 10
s_add_u32 s{sT1}, s{sT1}, {WS_RT}
v_add_u32 v31, s{sT1}, v31
s_mul_i32 s{sHO}, s{sT0}, {2*112*1024}
s_lshl_b32 s{sT1}, s{sT2}, 12
s_add_u32 s{sHO}, s{sHO}, s{sT1}
s_lshl_b32 s{sT0}, s{sT0}, 9
s_lshl4_add_u32 s{sTB}, s{sT2}, s{sT0}
s_add_u32 s{sTB}, s{sTB}, {WS_FH}
""")
sFLH = sTB
stamp(g1, 'g1_issued')
def g1_reads(t):
    st, s_ = divmod(t, 4); sl = st % 3; b = vF + 16*(t % 2)
    out = []
    for i in range(2):
        out.append([Ins(f"ds_read_b128 {vr(b+8+4*i,4)}, v{vAB+s_} offset:{16384*sl+4096*i}", f"k{t}")])
        for jj in range(2):
            out.append([Ins(f"ds_read_b64_tr_b16 {vr(b+4*i+2*jj,2)}, v{vAA+i} offset:{16384*sl+4096*s_+1024*jj}", f"k{t}")])
    return out
REC_LD = "\n".join([f"buffer_load_dwordx4 {vr(vRF+4*i,4)}, v30, {sr(rWS,4)}, 0 offen offset:{512*i} sc1" for i in range(2)] +
                   [f"buffer_load_dwordx4 {vr(vRT+4*i,4)}, v31, {sr(rWS,4)}, 0 offen offset:{512*i} sc1" for i in range(2)])
g1.wait(vm='st0'); g1("s_barrier")
stamp(g1, 'g1_st0')
g1.ext(flat(g1_reads(0)))
pend = g1_issue(2)
for t in range(32):
    st, s_ = divmod(t, 4); b = vF + 16*(t % 2)
    g1.wait(lg=f"k{t}")
    if s_ == 3:
        assert not pend
        if st < 7: g1.wait(vm=f"st{st+1}")
        g1("s_barrier")
        if st + 3 < 8: pend = g1_issue(st + 3)
        elif st == 5: pend = w2_issue(0) + w2_issue(1) + w2_issue(2)
        elif st == 6:
            tt = Seg('t'); tt(NONCE_LD, tok='rec'); tt(REC_LD, tok='rec')
            pend = [tt.items[0:2]] + [[x] for x in tt.items[2:]] + w2_pump(0)
    m = []
    for (i, j) in ((0,0),(1,0),(1,1),(0,1)):
        a = vACC + 16*(2*j+i)
        c = '0' if t == 0 else vr(a,16)
        m.append([Ins(f"v_mfma_f32_32x32x16_bf16 {vr(a,16)}, {vr(b+4*i,4)}, {vr(b+8+4*j,4)}, {c}")])
    rd = g1_reads(t+1) if t < 31 else []
    left = 3 - ((s_ + 1) % 4) + 1 if True else 0
    n = -(-len(pend) // left)
    fl, pend = pend[:n], pend[n:]
    g1.ext(m[0] + flat(rd[0:3]) + m[1] + flat(rd[3:6]) + m[2] + flat(fl[:(n+1)//2]) + m[3] + flat(fl[(n+1)//2:]))
assert not pend
stamp(g1, 'g1_done')
vEX = 144
g1(f"v_cmp_gt_u32 vcc, 32, v{vL}")
EXP = f"v_cndmask_b32 v{vEX}, 0, v{vN}, vcc"
g1.wait(vm='rec'); g1(EXP)
poll(g1, 'REC', NONCE_LD + "\n" + REC_LD + "\ns_waitcnt vmcnt(0)\n" + EXP,
     [('eq', 0, f"v{vN}"), ('ne', f"v{vRF+3}", f"v{vEX}"), ('ne', f"v{vRF+7}", f"v{vEX}"), ('ne', f"v{vRT+3}", f"v{vN}"), ('ne', f"v{vRT+7}", f"v{vN}")], 'rec')
stamp(g1, 'rec_ok')
g1(f"v_mov_b32 v{vRF+3}, 0\nv_mov_b32 v{vRF+7}, 0\nv_mov_b32 v{vRT+3}, 0\nv_mov_b32 v{vRT+7}, 0")
for (i, j) in ((0,0),(1,0),(0,1),(1,1)):
    a = vACC + 16*(2*j+i)
    g1(f"v_mfma_f32_32x32x16_bf16 {vr(a,16)}, {vr(vRF+4*i,4)}, {vr(vRT+4*j,4)}, {vr(a,16)}")
vSG, vKK = 146, 148
K1 = -2*0.7978845608028654*math.log2(math.e); K2 = K1*0.044715
import struct
def fhex(x): return hex(struct.unpack('<I', struct.pack('<f', x))[0])
for j in range(2):
    g1(f"""
v_and_b32 v{vSG+j}, 0xffff0000, v{vRT+4*j+1}
v_lshlrev_b32 v{vEX}, 16, v{vRT+4*j+2}
v_add_f32 v{vSG+j}, v{vSG+j}, v{vEX}
v_rcp_f32 v{vEX}, v{vSG+j}
v_mul_f32 v{vKK+2*j}, {fhex(K1)}, v{vEX}
v_mul_f32 v{vEX+1}, v{vEX}, v{vEX}
v_mul_f32 v{vEX}, {fhex(K2)}, v{vEX}
v_mul_f32 v{vKK+2*j+1}, v{vEX}, v{vEX+1}
""")
vGT, vH = 152, 160
def gelu_block(i, j, u):
    t = Seg('t'); a0 = vACC + 16*(2*j+i) + 8*u; h = vH + 4*(4*j+2*i+u)
    kk = vr(vKK+2*j, 2)
    P = range(4)
    for p in P: t(f"v_pk_mul_f32 {vr(vGT+2*p,2)}, {vr(a0+2*p,2)}, {vr(a0+2*p,2)}")
    for p in P: t(f"v_pk_fma_f32 {vr(vGT+2*p,2)}, {vr(vGT+2*p,2)}, {kk}, {kk} op_sel:[0,1,0] op_sel_hi:[1,1,0]")
    for p in P: t(f"v_pk_mul_f32 {vr(vGT+2*p,2)}, {vr(vGT+2*p,2)}, {vr(a0+2*p,2)}")
    for p in range(8): t(f"v_exp_f32 v{vGT+p}, v{vGT+p}")
    for p in P: t(f"v_pk_fma_f32 {vr(vGT+2*p,2)}, {vr(vGT+2*p,2)}, {vr(vSG,2)}, {vr(vSG,2)} op_sel:[0,{j},{j}] op_sel_hi:[1,{j},{j}]")
    for p in range(8): t(f"v_rcp_f32 v{vGT+p}, v{vGT+p}")
    for p in P: t(f"v_pk_mul_f32 {vr(vGT+2*p,2)}, {vr(vGT+2*p,2)}, {vr(a0+2*p,2)}")
    for p in P: t(f"v_cvt_pk_bf16_f32 v{h+p}, v{vGT+2*p}, v{vGT+2*p+1}")
    t(f"buffer_store_dwordx4 {vr(h,4)}, v{vL16}, {sr(rWS,4)}, s{sHO} offen offset:{1024*(2*i+u)} sc1", tok='hst')
    return t.items
NG1 = 6
blocks = []
for j in range(2):
    for i in range(2):
        for u in range(2):
            b = gelu_block(i, j, u)
            if (j, i, u) == (1, 0, 0): b = [Ins(f"s_add_u32 s{sHO}, s{sHO}, {112*1024}")] + b
            blocks.append(b)
seq = []
for g in range(1, NG1):
    p = w2_pump(g); seq += [flat(p[:8]), flat(p[8:])]
half = []
for b in blocks: half += [b[:len(b)//2], b[len(b)//2:]]
g1.ext(interleave(half, seq))
stamp(g1, 'gelu_done')
g1("s_branch L_JOIN" if False else "")

sv = Seg('service')
sSV, sCB = sA, sB
sv(f"""
L_SERVICE:
s_lshr_b32 s{sT0}, s{sXCD}, 1
s_lshl2_add_u32 s{sT0}, s{sT0}, s{sTBL}      ; jx
s_and_b32 s{sT1}, s{sXCD}, 1
s_lshl1_add_u32 s{sSV}, s{sT0}, s{sT1}       ; sv64
s_mul_i32 s{sT1}, s{sT1}, 14
s_min_u32 s{sT0}, s{sT0}, 13
s_add_u32 s{sCB}, s{sT1}, s{sT0}
s_lshl2_add_u32 s{sC}, s{sSV}, s{sW}
s_lshl_b32 s{sC}, s{sC}, 14                  ; (64sv+16w)*1024
s_mul_i32 s{sD}, s{sW}, {16*1040+64}
s_add_u32 s{sD}, s{sD}, {SX}
""")
for r in range(16):
    if r and r % 4 == 0: sv(f"s_add_u32 s{sC}, s{sC}, 4096")
    sv(f"s_add_u32 m0, s{sD}, {r*1040 + (r>>3)*32 - 1024*(r%4)}\ns_nop 0")
    sv(f"buffer_load_dwordx4 v{vL16}, {sr(rX,4)}, s{sC} offen offset:{1024*(r%4)} lds", tok='sx')
sv(f"global_load_dwordx4 v[32:35], v{vL16}, {sr(pGW)}", tok='sgw')
sv(f"""
s_lshl2_add_u32 s{sT0}, s{sCB}, s{sW}
s_lshl_b32 s{sT0}, s{sT0}, 4
v_and_b32 v16, 15, v{vL}
v_add_u32 v17, s{sT0}, v16
v_lshlrev_b32 v18, 1, v17
""")
sv(f"global_load_ushort v19, v18, {sr(pB1)}", tok='sb1')
sv(f"""
v_lshlrev_b32 v17, 4, v17
v_add_u32 v17, {WS_RF}, v17
v_lshrrev_b32 v20, 3, v{vL}
v_mul_u32_u24 v21, 3584, v20
v_and_b32 v22, 7, v{vL}
v_and_b32 v20, 6, v20
v_xor_b32 v22, v22, v20
v_lshl_add_u32 v20, v22, 4, v21
v_add_u32 v21, {8*3584-1024}, v20
v_add_u32 v22, {2*(8*3584-1024)}, v20
v_add_u32 v23, {3*(8*3584-1024)}, v20
s_mul_i32 s{sC}, s{sW}, {128*3584}
s_lshl_b32 s{sT0}, s{sCB}, 7
s_add_u32 s{sC}, s{sC}, s{sT0}
s_lshl_b32 s{sE}, s{sW}, 14
""")
for q in range(4):
    sv(f"s_add_u32 m0, s{sE}, {SSLAB + 4096*q}")
    sv(f"s_add_u32 s{sT3}, s{sC}, {32*3584*q}")
    for j in range(4): sv(f"buffer_load_dwordx4 v{20+j}, {sr(rW1,4)}, s{sT3} offen offset:{1024*j} lds", tok='sw')
sv(NONCE_LD, tok='snon')
sv(f"""
s_lshl_b32 s{sT0}, s{sW}, 11
s_add_u32 s{sT0}, s{sT0}, {SG}
v_add_u32 v24, s{sT0}, v{vL16}
v_mov_b32 v36, 0x3f803f80
v_mov_b32 v37, 0x3f803f80
v_mov_b32 v38, 0x3f803f80
v_mov_b32 v39, 0x3f803f80
ds_write_b128 v24, v[36:39] offset:1024
v_lshrrev_b32 v25, 4, v{vL}                  ; q
v_and_b32 v26, 1, v{vL}
v_lshlrev_b32 v26, 10, v26
v_lshl_add_u32 v26, v25, 4, v26
v_add_u32 v26, s{sT0}, v26
v_mul_u32_u24 v27, 1040, v16
v_bfe_u32 v28, v{vL}, 3, 1
v_lshl_add_u32 v27, v28, 5, v27
v_lshl_add_u32 v27, v25, 4, v27
v_add_u32 v27, s{sD}, v27
""")
sv.wait(vm='sgw')
sv("ds_write_b128 v24, v[32:35]")
stamp(sv, 'g1_st0')
for s_ in range(16):
    sv(f"ds_read_b128 {vr(64+4*s_,4)}, v27 offset:{64*s_}\nds_read_b128 {vr(128+4*s_,4)}, v26 offset:{64*s_}", tok=f"sr{s_}")
    if s_ >= 4:
        q = s_ - 4
        sv.wait(lg=f"sr{q}")
        sv(f"v_mfma_f32_16x16x32_bf16 v[40:43], {vr(64+4*q,4)}, {vr(64+4*q,4)}, {'0' if q == 0 else 'v[40:43]'}")
        sv(f"v_mfma_f32_16x16x32_bf16 v[44:47], {vr(128+4*q,4)}, {vr(64+4*q,4)}, {'0' if q == 0 else 'v[44:47]'}")
for q in range(12, 16):
    sv.wait(lg=f"sr{q}")
    sv(f"v_mfma_f32_16x16x32_bf16 v[40:43], {vr(64+4*q,4)}, {vr(64+4*q,4)}, v[40:43]")
    sv(f"v_mfma_f32_16x16x32_bf16 v[44:47], {vr(128+4*q,4)}, {vr(64+4*q,4)}, v[44:47]")
sv(f"""
v_and_b32 v28, 3, v{vL}
v_cmp_eq_u32 {sr(sM)}, 1, v28
v_cmp_eq_u32 {sr(sM+2)}, 2, v28
v_cmp_eq_u32 {sr(sM+4)}, 3, v28
v_bfe_u32 v28, v{vL}, 2, 2
v_cmp_eq_u32 {sr(sM+6)}, v28, v25
v_cndmask_b32 v40, v40, v41, {sr(sM)}
v_cndmask_b32 v40, v40, v42, {sr(sM+2)}
v_cndmask_b32 v40, v40, v43, {sr(sM+4)}
v_mul_f32 v45, {fhex(-1/512)}, v45            ; -mean
v_mul_f32 v40, {fhex(1/512)}, v40
v_fma_f32 v40, -v45, v45, v40
v_max_f32 v40, 0, v40
v_add_f32 v40, {fhex(1e-5)}, v40
v_sqrt_f32 v40, v40
v_mul_f32 v44, {fhex(-math.log2(math.e))}, v44
v_exp_f32 v44, v44
v_cvt_pk_bf16_f32 v49, v45, v40
v_add_f32 v44, 1.0, v44
v_rcp_f32 v44, v44
v_lshlrev_b32 v46, 16, v49
v_and_b32 v47, 0xffff0000, v49
v_sub_f32 v41, v45, v46
v_sub_f32 v42, v40, v47
v_cvt_pk_bf16_f32 v48, v46, v41
v_cvt_pk_bf16_f32 v50, v42, 0
s_lshl2_add_u32 s{sT0}, s{sSV}, s{sW}
s_lshl_b32 s{sT0}, s{sT0}, 4
v_add_u32 v28, s{sT0}, v16                   ; token
v_lshlrev_b32 v29, 4, v28
v_lshlrev_b32 v28, 2, v28
v_add_u32 v29, {WS_RT}, v29
v_add_u32 v28, {WS_G}, v28
""")
poll(sv, 'SNON', NONCE_LD, [('eq', 0, f"v{vN}")], 'snon')
sv(f"""
v_mov_b32 v51, v{vN}
s_mov_b64 exec, {sr(sM+6)}
buffer_store_dwordx4 v[48:51], v29, {sr(rWS,4)}, 0 offen sc1
buffer_store_dword v44, v28, {sr(rWS,4)}, 0 offen sc1
s_mov_b64 exec, -1
s_barrier
""")
stamp(sv, 'g1_done')
sv(f"""
v_lshrrev_b32 v28, 2, v{vL}                  ; 4G + r
v_bfe_u32 v29, v{vL}, 3, 2
v_xor_b32 v29, s{sW}, v29
v_lshlrev_b32 v29, 5, v29
v_lshl_add_u32 v28, v28, 7, v29
v_and_b32 v29, 3, v{vL}
v_lshl_add_u32 v28, v29, 3, v28
""")
for s_ in range(16):
    sv(f"ds_read_b64_tr_b16 {vr(64+4*s_,2)}, v28 offset:{SSLAB+4096*s_}\nds_read_b64_tr_b16 {vr(66+4*s_,2)}, v28 offset:{SSLAB+4096*s_+2048}", tok=f"sc{s_}")
    if s_ >= 4:
        q = s_ - 4
        sv.wait(lg=f"sc{q}")
        sv(f"v_mfma_f32_16x16x32_bf16 v[40:43], v[36:39], {vr(64+4*q,4)}, {'0' if q == 0 else 'v[40:43]'}")
for q in range(12, 16):
    sv.wait(lg=f"sc{q}")
    sv(f"v_mfma_f32_16x16x32_bf16 v[40:43], v[36:39], {vr(64+4*q,4)}, v[40:43]")
sv(f"""
v_and_b32 v28, 7, v{vL}
v_lshrrev_b32 v29, 3, v{vL}
v_lshlrev_b32 v30, 4, v28
v_lshl_add_u32 v30, v29, 14, v30
v_mul_u32_u24 v28, {8*1040+32}, v28
v_lshl_add_u32 v28, v29, 3, v28
s_lshl_b32 s{sT0}, s{sW}, 8
s_add_u32 s{sT0}, s{sT0}, {SX}
v_add_u32 v28, s{sT0}, v28
s_lshl_b32 s{sC}, s{sW}, 19
s_lshl_b32 s{sT0}, s{sSV}, 7
s_add_u32 s{sC}, s{sC}, s{sT0}
s_add_u32 s{sC}, s{sC}, {WS_UT}
s_mov_b32 s{sD}, 0x05040100
s_mov_b32 s{sE}, 0x07060302
v_cvt_pk_bf16_f32 v52, v40, v40
v_lshlrev_b32 v41, 16, v52
v_sub_f32 v41, v40, v41
v_lshlrev_b32 v42, 16, v19
v_cvt_pk_bf16_f32 v53, v41, v42
v_mov_b32 v54, v19
v_mov_b32 v55, v{vN}
s_mov_b64 exec, 0xffff
buffer_store_dwordx4 v[52:55], v17, {sr(rWS,4)}, 0 offen sc1
s_mov_b64 exec, -1
""")
for p in range(4):
    for j in range(8): sv(f"ds_read_b64 {vr(64+16*p+2*j,2)}, v28 offset:{1040*j+64*p}", tok=f"su{p}")
    if p == 1:
        pass
for p in range(4):
    sv.wait(lg=f"su{p}")
    for e in range(4):
        o = 128 + 16*p + 4*e
        for jj in range(4):
            sv(f"v_perm_b32 v{o+jj}, v{64+16*p+4*jj+2+(e>>1)}, v{64+16*p+4*jj+(e>>1)}, s{sE if e & 1 else sD}")
        sv(f"s_add_u32 s{sT3}, s{sC}, {(32*p+e)*4096}")
        sv(f"buffer_store_dwordx4 {vr(o,4)}, v30, {sr(rWS,4)}, s{sT3} offen sc1")
stamp(sv, 'rec_ok')
sv(f"""
s_waitcnt vmcnt(0)
s_barrier
s_lshl_b32 s{sFLH}, s{sSV}, 4
s_add_u32 s{sFLH}, s{sFLH}, {WS_FU}
v_mov_b32 v28, 0
s_mov_b64 exec, 1
buffer_store_dword v{vN}, v28, {sr(rWS,4)}, s{sFLH} offen sc1
s_mov_b64 exec, -1
""")
for g in range(3): sv.ext(flat(w2_issue(g)))
for g in range(NG1): sv.ext(flat(w2_pump(g)))
stamp(sv, 'gelu_done')
sv("s_nop 7\ns_branch L_JOIN")

tl = Seg('tail')
tl("L_JOIN:")
sCH, sHF = sA, sB
vW, vX, vBB, vTM, vCV = 32, 66, 70, 74, 78
vTA = 16
FU_LD = f"buffer_load_dword v17, v18, {sr(rWS,4)}, 0 offen sc1"
tl(f"""
s_lshr_b32 s{sCH}, s{sW}, 1
s_and_b32 s{sHF}, s{sW}, 1
v_and_b32 v18, 31, v{vL}
v_lshlrev_b32 v18, 4, v18
v_add_u32 v18, {WS_FU}, v18
""")
tl(FU_LD, tok='fu')
tl.wait(vm='par')
LOG2E = math.log2(math.e)
kg = Seg('kg')
kg(f"""
v_lshlrev_b32 v{vP}, 16, v{vP}
v_lshlrev_b32 v{vP+4}, 16, v{vP+4}
v_mul_f32 v{vP}, {fhex(LOG2E)}, v{vP}
v_mul_f32 v{vP+4}, {fhex(LOG2E)}, v{vP+4}
v_exp_f32 v{vP}, v{vP}
v_exp_f32 v{vP+4}, v{vP+4}
v_lshlrev_b32 v{vP+1}, 16, v{vP+1}
v_lshlrev_b32 v{vP+2}, 16, v{vP+2}
v_lshlrev_b32 v{vP+3}, 16, v{vP+3}
v_cvt_pk_bf16_f32 v{vP}, v{vP+4}, v{vP}
v_lshlrev_b32 v{vP+4}, 16, v{vP}             ; dt
v_and_b32 v{vP}, 0xffff0000, v{vP}           ; exp(logA)
v_mul_f32 v{vP}, v{vP}, v{vP+4}
v_mul_f32 v{vP+1}, v{vP+1}, v{vP+4}
v_mul_f32 v{vP}, {fhex(-LOG2E)}, v{vP}
v_mul_f32 v{vP+1}, 0.15915494, v{vP+1}
v_add_f32 v{vP+4}, v{vP+4}, v{vP+4}
v_mul_f32 v{vX}, v{vP+2}, v{vP+4}
v_mul_f32 v{vX+1}, -v{vP+3}, v{vP+4}
v_mul_f32 v{vTM}, 0x43800000, v{vP}
v_mul_f32 v{vTM+1}, 0x43800000, v{vP+1}
v_fract_f32 v{vP+1}, v{vP+1}
v_fract_f32 v{vTM+1}, v{vTM+1}
v_exp_f32 v{vP}, v{vP}
v_exp_f32 v{vTM}, v{vTM}
v_cos_f32 v{vW+2}, v{vP+1}
v_sin_f32 v{vW+3}, v{vP+1}
v_cos_f32 v{vW}, v{vTM+1}
v_sin_f32 v{vW+1}, v{vTM+1}
s_mul_i32 s{sT0}, s{sCH}, {TBS}
s_lshl_b32 s{sT1}, s{sHF}, 8
s_add_u32 s{sT0}, s{sT0}, s{sT1}
s_add_u32 s{sT0}, s{sT0}, {TB}
v_lshl_add_u32 v{vTA}, v{vL}, 2, s{sT0}
v_pk_mul_f32 {vr(vW+2,2)}, {vr(vW+2,2)}, {vr(vP,2)} op_sel_hi:[1,0]
v_pk_mul_f32 {vr(vW,2)}, {vr(vW,2)}, {vr(vTM,2)} op_sel_hi:[1,0]
v_mov_b32 v{vCV}, 0x3f80
ds_write_b32 v{vTA}, v{vCV}
""")
cvn = [1]
def cmul(d, x, w, conj=False):
    kg(f"v_pk_mul_f32 {vr(vTM,2)}, {vr(x,2)}, {vr(w,2)} op_sel_hi:[1,0]")
    kg(f"v_pk_fma_f32 {vr(d,2)}, {vr(x,2)}, {vr(w,2)}, {vr(vTM,2)} op_sel:[1,1,0] op_sel_hi:[0,1,1] {'neg_hi' if conj else 'neg_lo'}:[1,0,0]")
def put(row, x):
    c = vCV + cvn[0] % 4; cvn[0] += 1
    kg(f"v_cvt_pk_bf16_f32 v{c}, v{x}, v{x+1}\nds_write_b32 v{vTA}, v{c} offset:{TROW*row}")
put(1, vW+2)
for j in range(2, 17):
    cmul(vW+2*j, vW+2*(j-1), vW+2)
    if j < 16: put(j, vW+2*j)
put(47, vX)
for a in range(1, 16):
    cmul(vX+2*(a%2), vX+2*((a-1)%2), vW+32, conj=True); put(47+a, vX+2*(a%2))
ROWB = [0, 16, 25, 30, 35, 38, 41, 44]
SP = [1, 2, 4, 4, 8, 8, 8, 8]
for tau in range(1, 8):
    if tau == 1: b = vW
    else:
        nb = vBB + 2*(tau % 2); cmul(nb, b, vW); b = nb
    put(ROWB[tau], b)
    for k in range(1, 16//SP[tau] + 1):
        cmul(vX, b, vW + 2*k*SP[tau]); put(ROWB[tau]+k, vX)
items = kg.items
nch = 20
chunks = [items[len(items)*i//nch: len(items)*(i+1)//nch] for i in range(nch)]
def S(f):
    t = Seg('t'); f(t); return t.items
def u_dma(t):
    poll(t, 'FU', FU_LD, [('ne', 'v17', f"v{vN}")], 'fu')
    t(f"""
s_lshl1_add_u32 s{sT0}, s2, s{sCH}
s_lshl_b32 s{sT0}, s{sT0}, 12
s_lshl2_add_u32 s{sT0}, s{sHF}, s{sT0}
s_add_u32 s{sT0}, s{sT0}, {WS_UT - 6}
s_mul_i32 s{sC}, s{sW}, {2*4160}
s_add_u32 s{sC}, s{sC}, {UL + 32}
s_mov_b32 m0, s{sC}
s_add_u32 s{sT1}, s{sT0}, 2
""")
    for j in range(4): t(f"buffer_load_dwordx4 v{vL16}, {sr(rWS,4)}, s{sT0} offen offset:{1024*j} sc1 lds", tok='ud')
def u_dma2(t):
    t(f"s_add_u32 m0, s{sC}, 4160\ns_nop 0")
    for j in range(4): t(f"buffer_load_dwordx4 v{vL16}, {sr(rWS,4)}, s{sT1} offen offset:{1024*j} sc1 lds", tok='ud')
def h_flag(t):
    t.wait(vm='hst')
    t(f"""
v_mov_b32 v19, 0
s_mov_b64 exec, 1
buffer_store_dword v{vN}, v19, {sr(rWS,4)}, s{sFLH} offen sc1
s_mov_b64 exec, -1
""")
seq = []
p = w2_pump(NG1); seq += [flat(p[:8]), flat(p[8:])]
seq += [S(u_dma), S(u_dma2)]
p = w2_pump(NG1+1); seq += [flat(p[:8]), flat(p[8:])]
seq += [S(h_flag)]
for g in range(NG1+2, NG1+4):
    p = w2_pump(g); seq += [flat(p[:8]), flat(p[8:])]
tl.ext(interleave(chunks, seq, start=3))
NG2 = NG1 + 4
stamp(tl, 'kgen_done')
vRA = 16
tl(f"""
v_and_b32 v22, 15, v{vL}
v_lshrrev_b32 v23, 4, v{vL}
s_mul_i32 s{sT0}, s{sCH}, {TBS}
s_add_u32 s{sT0}, s{sT0}, {TB}
v_lshl_add_u32 v24, v23, 4, s{sT0}           ; base + 16q
v_mul_u32_u24 v20, {TROW}, v22
v_add_u32 v20, v20, v24
v_sub_u32 v25, 15, v22
v_cvt_f32_u32 v25, v25
s_cmp_eq_u32 s{sHF}, 0
""")
for tt in range(4):
    tl(f"""
s_cselect_b32 s{sT0}, {fhex(1/SP[tt]) if SP[tt] == 4 else ('1.0' if SP[tt] == 1 else '0.5')}, 0
s_cselect_b32 s{sT1}, 0, {fhex(0.125)}
s_cselect_b32 s{sT2}, {ROWB[tt]}, {ROWB[4+tt]}
v_mov_b32 v26, s{sT0}
v_or_b32 v26, s{sT1}, v26
v_mul_f32 v26, v26, v25
v_rndne_f32 v26, v26
v_cvt_u32_f32 v26, v26
v_add_u32 v26, s{sT2}, v26
v_mul_u32_u24 v26, {TROW}, v26
v_add_u32 v{vRA+tt}, v26, v24
""")
vKA = 32
tl(f"""
s_cselect_b32 s{sT0}, 48, 64
s_cselect_b32 s{sT1}, 2048, 0
v_cmp_eq_u32 vcc, s{sT0}, v{vL}
v_lshlrev_b32 v{vP+5}, 16, v{vP+5}
v_mov_b32 v{vKA}, 0
v_mov_b32 v{vKA+1}, 0
v_mov_b32 v{vKA+2}, 0
v_cndmask_b32 v{vKA+3}, 0, v{vP+5}, vcc
s_mul_i32 s{sD}, s{sCH}, 4608
s_add_u32 s{sD}, s{sD}, {KL + 480}
s_add_u32 s{sT1}, s{sT1}, s{sD}
v_lshlrev_b32 v21, 3, v23
v_lshlrev_b32 v26, 5, v22
v_sub_u32 v21, v21, v26
v_add_u32 v21, s{sT1}, v21
""")
tl(f"""
v_mov_b32 v26, 0
s_lshl_b32 s{sT0}, s{sHF}, 8
s_add_u32 s{sT0}, s{sT0}, s{sD}
s_add_u32 s{sT0}, s{sT0}, {4096 - 480}
v_lshl_add_u32 v27, v{vL}, 2, s{sT0}
ds_write_b32 v27, v26
v_and_b32 v27, 7, v{vL}
s_sub_u32 s{sT0}, s{sC}, 32
v_lshl_add_u32 v27, v27, 2, s{sT0}
ds_write_b32 v27, v26
ds_write_b32 v27, v26 offset:4160
""")
tl.wait(lg=0); tl("s_barrier")
stamp(tl, 'kb1')
vKF = 48
def kreads(ks):
    out = [Ins(f"ds_read_b128 {vr(vKF+20*ks,4)}, v20 offset:{47*TROW+64*ks}", f"kk{ks}")]
    for tt in range(4): out.append(Ins(f"ds_read_b128 {vr(vKF+20*ks+4+4*tt,4)}, v{vRA+tt} offset:{64*ks}", f"kk{ks}"))
    return out
tl.ext(kreads(0) + kreads(1))
for ks in range(8):
    tl.wait(lg=f"kk{ks}")
    rd = kreads(ks+2) if ks + 2 < 8 else []
    for tt in range(4):
        c = '0' if (ks == 0 and tt) else vr(vKA+4*tt, 4)
        tl(f"v_mfma_f32_16x16x32_bf16 {vr(vKA+4*tt,4)}, {vr(vKF+20*ks+4+4*tt,4)}, {vr(vKF+20*ks,4)}, {c}")
        tl.ext(rd[tt:tt+1] if tt < 3 else rd[3:])
vAT, vAP = 16, 17
tl(f"""
s_lshl_b32 s{sT0}, s{sHF}, 8
s_add_u32 s{sD}, s{sD}, s{sT0}
v_lshlrev_b32 v{vAP}, 4, v23
v_lshlrev_b32 v26, 5, v22
v_sub_u32 v{vAP}, v{vAP}, v26
v_add_u32 v{vAP}, s{sD}, v{vAP}
s_mul_i32 s{sT1}, s{sCH}, {4*4160}
s_add_u32 s{sT0}, s{sT0}, s{sT1}
s_add_u32 s{sT0}, s{sT0}, {UL + 32 - 24}
v_and_b32 v26, 3, v22
v_mul_u32_u24 v26, 4160, v26
v_lshl_add_u32 v26, v23, 4, v26
v_lshrrev_b32 v27, 2, v22
v_lshl_add_u32 v26, v27, 3, v26
v_add_u32 v{vAT}, s{sT0}, v26
""")
for tt in range(4):
    tl(f"""
v_cvt_pk_bf16_f32 v{vKF+2*tt}, v{vKA+4*tt}, v{vKA+4*tt+1}
v_cvt_pk_bf16_f32 v{vKF+2*tt+1}, v{vKA+4*tt+2}, v{vKA+4*tt+3}
ds_write_b64 v21, {vr(vKF+2*tt,2)} offset:{512*(3-tt)}
""")
tl.wait(vm='ud')
tl(f"""
v_mov_b32 v26, 0
s_lshl_b32 s{sT0}, s{sHF}, 2
s_sub_u32 s{sT0}, s{sC}, s{sT0}
v_and_b32 v27, 3, v{vL}
v_lshl_add_u32 v27, v27, 1, s{sT0}
v_subrev_u32 v27, 2, v27
ds_write_b16 v27, v26
ds_write_b16 v27, v26 offset:{4160-2}
""")
tl.wait(lg=0); tl("s_barrier")
stamp(tl, 'kb2')
vCA = 32; vCF = 64
def creads(rr):
    b = vCF + 64*(rr % 2); out = []
    for k in range(8):
        out.append([Ins(f"ds_read_b64 {vr(b+8*k,2)}, v{vAT} offset:{512*k+64*rr}", f"c{rr}_{k}"),
                    Ins(f"ds_read_b64 {vr(b+8*k+2,2)}, v{vAT} offset:{512*k+64*rr+8}", f"c{rr}_{k}")])
        out.append([Ins(f"ds_read_b128 {vr(b+8*k+4,4)}, v{vAP} offset:{512*(7-k)+64*rr}", f"c{rr}_{k}")])
    return out
tl.ext(flat(creads(0)))
first = set()
FH_LD = f"buffer_load_dword v19, v18, {sr(rWS,4)}, 0 offen sc1"
for rr in range(4):
    b = vCF + 64*(rr % 2)
    m = []
    for k in range(8):
        prs = [(k, d) for d in range(k) if k + d <= 7] + [(sg, k) for sg in range(k+1) if sg + k <= 7]
        for n, (sg, d) in enumerate(prs):
            c = sg + d
            cin = vr(vCA+4*c,4) if c in first else '0'
            first.add(c)
            it = [Ins(f"v_mfma_f32_16x16x32_bf16 {vr(vCA+4*c,4)}, {vr(b+8*sg,4)}, {vr(b+8*d+4,4)}, {cin}")]
            if n == 0: it = [Wait(lg=f"c{rr}_{k}")] + it
            m.append(it)
    fl = creads(rr+1) if rr < 3 else []
    pm = w2_pump(NG2 + rr) if NG2 + rr < 14 else []
    if rr == 3:
        t = Seg('t')
        t(f"""
v_min_u32 v18, 6, v{vL}
s_mul_i32 s{sT0}, s{sW}, 112
s_lshl_b32 s{sT1}, s{sT64}, 9
s_add_u32 s{sT0}, s{sT0}, s{sT1}
s_add_u32 s{sT0}, s{sT0}, {WS_FH}
v_lshl_add_u32 v18, v18, 4, s{sT0}
""")
        t(FH_LD, tok='fh')
        pm = pm + [[x] for x in t.items]
    tl.ext(interleave(m, pm + fl, start=(8 if rr == 0 else 0)))
assert NG2 + 4 >= 14
stamp(tl, 'conv_done')
vGA = 32; vHF = 96; NH = 16; LOOK = 12
sH0 = sA
def hload(n):
    j, sg = divmod(n, 28); out = []
    if sg % 2 == 0: out.append(Ins(f"s_add_u32 s{sT3}, s{sH0+j}, s{sG+sg//2}"))
    out.append(Ins(f"buffer_load_dwordx4 {vr(vHF+4*(n%NH),4)}, v{vL16}, {sr(rWS,4)}, s{sT3} offen offset:{1024*(sg%2)} sc1", f"h{n}"))
    return out
tl(f"""
s_lshl_b32 s{sT0}, s{sW}, 13
s_add_u32 s{sT0}, s{sT0}, {EX}
v_add_u32 v20, s{sT0}, v{vL16}
s_lshl_b32 s{sT0}, s{sW}, 11
s_add_u32 s{sT0}, s{sT0}, {EX}
v_add_u32 v21, s{sT0}, v{vL16}
s_mul_i32 s{sH0}, s{sT64}, {2*112*1024}
s_mul_i32 s{sT0}, s{sW}, {28*1024}
s_add_u32 s{sH0}, s{sH0}, s{sT0}
s_add_u32 s{sH0+1}, s{sH0}, {112*1024}
""")
for c in range(8): tl(f"ds_write_b128 v20, {vr(vCA+4*c,4)} offset:{1024*c}")
poll(tl, 'FH', FH_LD, [('ne', 'v19', f"v{vN}")], 'fh')
stamp(tl, 'fh_ok')
for n in range(6): tl.ext(hload(n))
tl.wait(lg=0); tl("s_barrier")
vE = 192
for src in range(4):
    for cc in range(2): tl(f"ds_read_b128 {vr(vE+8*src+4*cc,4)}, v21 offset:{8192*src+1024*cc}", tok=f"ex")
tl(f"""
s_lshl2_add_u32 s{sC}, s2, s{sW}
s_lshl_b32 s{sC}, s{sC}, 11
s_add_u32 s{sC}, s{sC}, {WS_A2}
""")
tl.wait(lg='ex')
for p in range(4):
    tl(f"v_pk_add_f32 {vr(vE+2*p,2)}, {vr(vE+2*p,2)}, {vr(vE+8+2*p,2)}\nv_pk_add_f32 {vr(vE+16+2*p,2)}, {vr(vE+16+2*p,2)}, {vr(vE+24+2*p,2)}")
for p in range(8): tl(f"v_cvt_pk_bf16_f32 v{vE+8+p}, v{vE+p}, v{vE+16+p}")
for cc in range(2): tl(f"buffer_store_dwordx4 {vr(vE+8+4*cc,4)}, v{vL16}, {sr(rWS,4)}, s{sC} offen offset:{1024*cc} sc1", tok='ast')
for n in range(6, LOOK): tl.ext(hload(n))
stamp(tl, 'a_stored')
vPW, vPR, vAR, vOO, vGO = 16, 20, 22, 23, 24
vB2, vGG, vAA2, vGA8, vS = 160, 164, 168, 176, 208
vB2F = 240
FA_LD = f"buffer_load_dword v26, v25, {sr(rWS,4)}, 0 offen sc1"
def setup_final(t):
    t(f"""
v_and_b32 v26, 31, v{vL}
v_lshrrev_b32 v27, 5, v{vL}
v_and_b32 v28, 7, v{vL}
v_xor_b32 v27, v27, v28
v_lshlrev_b32 v27, 4, v27
v_lshl_add_u32 v{vPW}, v26, 8, v27
v_xor_b32 v{vPW+1}, 32, v{vPW}
v_xor_b32 v{vPW+2}, 64, v{vPW}
v_xor_b32 v{vPW+3}, 96, v{vPW}
s_lshr_b32 s{sT0}, s{sT64}, 3
s_lshl2_add_u32 s{sT0}, s{sDB}, s{sT0}
s_lshl_b32 s{sT0}, s{sT0}, 9
s_add_u32 s{sT0}, s{sT0}, {WS_FA}
v_lshl_add_u32 v25, v26, 4, s{sT0}
v_bfe_u32 v26, v{vL}, 3, 2
v_lshrrev_b32 v27, 5, v{vL}
v_lshl_add_u32 v29, v27, 4, v26
s_lshl_b32 s{sT0}, s{sW}, 2
v_add_u32 v29, s{sT0}, v29
v_and_b32 v30, 7, v29
v_lshlrev_b32 v31, 1, v28
v_xor_b32 v30, v30, v31
v_lshlrev_b32 v30, 4, v30
v_lshl_add_u32 v{vPR}, v29, 8, v30
v_xor_b32 v{vPR+1}, 16, v{vPR}
v_lshlrev_b32 v{vAR}, 8, v28
v_lshl_add_u32 v{vAR}, v27, 4, v{vAR}
v_lshl_add_u32 v{vAR}, v26, 2, v{vAR}
s_lshl_b32 s{sD}, s{sW}, 11
s_add_u32 s{sD}, s{sD}, {A2L}
v_add_u32 v{vAR}, s{sD}, v{vAR}
s_lshl_b32 s{sT0}, s{sT64}, 6
v_add_u32 v29, s{sT0}, v29
v_lshlrev_b32 v{vGO}, 2, v29
v_add_u32 v{vGO}, {WS_G}, v{vGO}
s_lshl_b32 s{sT0}, s{sDB}, 7
v_lshl_add_u32 v30, v28, 4, s{sT0}
v_lshl_add_u32 v{vOO}, v29, 10, v30
""")
    t(f"global_load_dwordx4 {vr(vB2,4)}, v30, {sr(pB2)}", tok='fin')
    t(f"buffer_load_dword v{vGG}, v{vGO}, {sr(rWS,4)}, 0 offen sc1\nbuffer_load_dword v{vGG+1}, v{vGO}, {sr(rWS,4)}, 0 offen offset:128 sc1", tok='fin')
    t(f"""
v_lshrrev_b32 v27, 2, v{vL}
v_and_b32 v28, 3, v{vL}
v_lshlrev_b32 v28, 4, v28
v_lshl_add_u32 v27, v27, 13, v28
s_lshl_b32 s{sE}, s{sDB}, 18
s_lshr_b32 s{sT0}, s{sT64}, 2
s_lshl_b32 s{sT0}, s{sT0}, 10
s_add_u32 s{sE}, s{sE}, s{sT0}
s_lshl2_add_u32 s{sT0}, s{sW}, s{sTBL}
s_lshl_b32 s{sT0}, s{sT0}, 6
s_add_u32 s{sE}, s{sE}, s{sT0}
s_add_u32 s{sE}, s{sE}, {WS_A2}
""")
def a_flag(t):
    t(f"""
s_lshr_b32 s{sT0}, s2, 5
s_lshl2_add_u32 s{sT0}, s{sT0}, s{sW}
s_lshl_b32 s{sT0}, s{sT0}, 5
s_and_b32 s{sT1}, s2, 31
s_add_u32 s{sT0}, s{sT0}, s{sT1}
s_lshl_b32 s{sT0}, s{sT0}, 4
s_add_u32 s{sT0}, s{sT0}, {WS_FA}
v_mov_b32 v26, 0
""")
    t.wait(vm='ast')
    t(f"s_mov_b64 exec, 1\nbuffer_store_dword v{vN}, v26, {sr(rWS,4)}, s{sT0} offen sc1\ns_mov_b64 exec, -1")
def a_dma(t):
    poll(t, 'FA', FA_LD, [('ne', 'v26', f"v{vN}")], 'fa')
    t(f"s_mov_b32 m0, s{sD}\ns_add_u32 s{sT0}, s{sE}, {16*8192 - 1024}")
    t(f"buffer_load_dwordx4 v27, {sr(rWS,4)}, s{sE} offen sc1 lds\nbuffer_load_dwordx4 v27, {sr(rWS,4)}, s{sT0} offen offset:1024 sc1 lds", tok='ad')
def a_calc(t):
    t.wait(vm=['ad', 'fin'])
    for j in range(2):
        t(f"ds_read2_b32 {vr(vAA2+4*j,2)}, v{vAR} offset0:{8*j} offset1:{8*j+16}\nds_read2_b32 {vr(vAA2+4*j+2,2)}, v{vAR} offset0:{8*j+32} offset1:{8*j+48}", tok='ar')
    for e in range(4): t(f"v_lshlrev_b32 v{vB2F+2*e}, 16, v{vB2+e}\nv_and_b32 v{vB2F+2*e+1}, 0xffff0000, v{vB2+e}")
    t(f"v_sub_f32 v{vGG+2}, 1.0, v{vGG}\nv_sub_f32 v{vGG+3}, 1.0, v{vGG+1}")
    t.wait(lg='ar')
    for j in range(2):
        for e in range(4):
            d = vGA8 + 8*j + 2*e
            t(f"""
v_lshlrev_b32 v{d}, 16, v{vAA2+4*j+e}
v_and_b32 v{d+1}, 0xffff0000, v{vAA2+4*j+e}
v_mul_f32 v{d}, v{vGG+j}, v{d}
v_mul_f32 v{d+1}, v{vGG+j}, v{d+1}
v_fmac_f32 v{d}, v{vGG+2+j}, v{vB2F+2*e}
v_fmac_f32 v{d+1}, v{vGG+2+j}, v{vB2F+2*e+1}
""")
def part_write(t, j):
    if j == 0:
        for q in range(4): t(f"v_add_u32 v{vPW+q}, s{sSTG}, v{vPW+q}")
    else:
        t(f"s_lshl_b32 s{sT0}, s{sW}, 12\ns_sub_u32 s{sT0}, {P1}, s{sT0}")
        for q in range(4): t(f"v_add_u32 v{vPW+q}, s{sT0}, v{vPW+q}")
    for i in range(2):
        for q in range(4): t(f"ds_write_b128 v{vPW+q}, {vr(vGA+16*(2*j+i)+4*q,4)} offset:{128*i}")
def part_read(t, j):
    t.wait(lg=0); t("s_barrier")
    if j == 1: t(f"v_add_u32 v{vPR}, {P1}, v{vPR}\nv_add_u32 v{vPR+1}, {P1}, v{vPR+1}")
    for src in range(4):
        for b in range(2): t(f"ds_read_b128 {vr(vS+8*src+4*b,4)}, v{vPR+b} offset:{(12288 if j == 0 else 8192)*src}", tok=f"pr{j}_{src}")
def part_fin(t, j, pk):
    t.wait(lg=f"pr{j}_1")
    def add(d, a, b):
        if pk:
            for p in range(4): t(f"v_pk_add_f32 {vr(d+2*p,2)}, {vr(a+2*p,2)}, {vr(b+2*p,2)}")
        else:
            for p in range(8): t(f"v_add_f32 v{d+p}, v{a+p}, v{b+p}")
    add(vS, vS, vS+8)
    t.wait(lg=f"pr{j}_3")
    add(vS+16, vS+16, vS+24); add(vS, vS, vS+16)
    if pk:
        for p in range(4): t(f"v_pk_fma_f32 {vr(vS+2*p,2)}, {vr(vS+2*p,2)}, {vr(vGG+2,2)}, {vr(vGA8+8*j+2*p,2)} op_sel:[0,{j},0] op_sel_hi:[1,{j},1]")
    else:
        for p in range(8): t(f"v_fma_f32 v{vS+p}, v{vS+p}, v{vGG+2+j}, v{vGA8+8*j+p}")
    for p in range(4): t(f"v_cvt_pk_bf16_f32 v{248+p}, v{vS+2*p}, v{vS+2*p+1}")
    if j == 1: t(f"v_add_u32 v{vOO}, {32*1024}, v{vOO}")
    t(f"buffer_store_dwordx4 v[248:251], v{vOO}, {sr(rOUT,4)}, 0 offen")
def grp(items):
    out, cur, hold = [], [], False
    for it in items:
        cur.append(it)
        if isinstance(it, Ins):
            if it.text.startswith('s_mov_b64 exec'): hold = not it.text.endswith('-1')
            if it.text.startswith('v_cmp_') or it.text.startswith('s_or_b64') or it.text.startswith('s_cbranch') or 'm0' in it.wr: continue
            if not hold: out.append(cur); cur = []
    if cur: out.append(cur)
    return out
tl.wait(lg='w2r13')
halves = []
for j in range(2):
    m = []
    for sg in range(28):
        n = 28*j + sg
        for i in range(2):
            a = vGA + 16*(2*j+i)
            it = [Ins(f"v_mfma_f32_32x32x16_bf16 {vr(a,16)}, {ar(8*sg+4*i,4)}, {vr(vHF+4*(n%NH),4)}, {'0' if sg == 0 else vr(a,16)}")]
            if i == 0: it = [Wait(vm=f"h{n}")] + it
            if i == 1 and n + LOOK < 56: it += hload(n + LOOK)
            m.append(it)
    halves.append(m)
f0 = grp(S(setup_final))
tl.ext(interleave(halves[0][:24], f0))
tl.ext(interleave(halves[0][24:], grp(S(a_flag)), per=2))
stamp(tl, 'g2_half')
t = Seg('t'); t(FA_LD, tok='fa')
A = halves[1]
tl.ext(interleave(A[:14], [t.items] + grp(S(lambda x: part_write(x, 0))), start=1))
tl.ext(interleave(A[14:24], grp(S(a_dma)) + grp(S(lambda x: part_read(x, 0)))))
tl.ext(flat(A[24:34]))
tl.ext(interleave(A[34:], grp(S(a_calc)) + grp(S(lambda x: part_fin(x, 0, False)))))
stamp(tl, 'g2_done')
part_write(tl, 1); part_read(tl, 1); part_fin(tl, 1, True)
stamp(tl, 'end')
if cfg.diag:
    tl(f"s_memrealtime {sr(sSTAMP)}\ns_waitcnt lgkmcnt(0)\nv_mov_b32 v16, s100\nv_mov_b32 v17, s{sSTAMP}")
    tl(f"s_getreg_b32 s{sT0}, hwreg(HW_REG_XCC_ID)\nv_mov_b32 v18, s{sT0}\nv_mov_b32 v19, 0")
    tl(f"s_lshl2_add_u32 s{sT0}, s2, s{sW}\ns_lshl_b32 s{sT0}, s{sT0}, 8\ns_add_u32 s{sT0}, s{sT0}, {WS_DG}\nv_mov_b32 v20, 0\ns_mov_b64 exec, 1")
    tl(f"buffer_store_dwordx4 v[16:19], v20, {sr(rWS,4)}, s{sT0} offen")
    for q in range(8): tl(f"buffer_store_dwordx4 {ar(224+4*q,4)}, v20, {sr(rWS,4)}, s{sT0} offen offset:{16+16*q}")
tl("L_END:\ns_endpgm")

paths = [[pro, g1, tl], [pro, sv, tl]]
resolve_waits(paths)
fix_hazards(paths + [[slow]])
order = [pro, g1, tl, sv, slow]
align8(order)
hdr = open('cdna_kernels/' + NAME + '.s.ref').read().split('; @launch')[0]
txt = hdr + f"""; @launch grid=(256,1,1) block=(256,1,1) lds={LDS_SZ}
.amdgcn_target "amdgcn-amd-amdhsa--gfx950"
.text
.globl {NAME}_kernel
.p2align 8
.type {NAME}_kernel,@function
{NAME}_kernel:
""" + render(order) + f"""
    s_endpgm
.p2align 8
.fill 8192, 4, 0xbf810000
.section .rodata,"a"
.p2align 6
.amdhsa_kernel {NAME}_kernel
  .amdhsa_next_free_vgpr 512
  .amdhsa_next_free_sgpr 102
  .amdhsa_accum_offset 256
  .amdhsa_group_segment_fixed_size 0
  .amdhsa_kernarg_size 128
  .amdhsa_user_sgpr_count 2
  .amdhsa_user_sgpr_kernarg_segment_ptr 1
  .amdhsa_system_sgpr_workgroup_id_x 1
.end_amdhsa_kernel
"""
open(sys.argv[1], 'w').write(txt)
if cfg.diag: open(sys.argv[1] + '.stamps', 'w').write(' '.join(stamps))
```

```python
import sys, re
NAME = 'gated_mix__ssm_conv_s4d__mixer_channel_mlp__prompt_kernel'
src = open(sys.argv[1]).read()
names = open(sys.argv[1] + '.stamps').read().split()
kd = """
.p2align 6
.amdhsa_kernel probe_kernel
  .amdhsa_next_free_vgpr 32
  .amdhsa_next_free_sgpr 64
  .amdhsa_accum_offset 32
  .amdhsa_group_segment_fixed_size 0
  .amdhsa_kernarg_size 128
  .amdhsa_user_sgpr_count 2
  .amdhsa_user_sgpr_kernarg_segment_ptr 1
  .amdhsa_system_sgpr_workgroup_id_x 1
.end_amdhsa_kernel
"""
def probe(what):
    if what in ('span', 'skew', 'none', 'gapend', 'gapstart', 'none2', 'pdur'): off = 4
    else: off = 16 + 4*names.index(what)
    b = f"""
.globl probe_kernel
.p2align 8
.type probe_kernel,@function
probe_kernel:
    s_cmp_ge_u32 s2, 1
    s_cbranch_scc1 P_END
    s_memrealtime s[20:21]
    s_load_dwordx2 s[4:5], s[0:1], 120
    v_lshlrev_b32 v1, 8, v0
    v_add_u32 v1, {16<<20}, v1
    v_mov_b32 v4, 0
    v_mov_b32 v5, 0
    v_mov_b32 v6, -1
    s_mov_b32 s6, 14
    s_waitcnt lgkmcnt(0)
P_L:
    global_load_dword v2, v1, s[4:5] offset:{0 if what == 'skew' else off}
    global_load_dword v3, v1, s[4:5]
    s_waitcnt vmcnt(0)
    v_add_u32 v4, v4, v2
    v_max_u32 v5, v5, v2
    v_min_u32 v6, v6, v3
    v_add_u32 v1, 16384, v1
    s_sub_u32 s6, s6, 1
    s_cmp_lg_u32 s6, 0
    s_cbranch_scc1 P_L
    s_mov_b32 s8, 0
    s_mov_b32 s9, 0
    s_mov_b32 s10, -1
    s_mov_b32 s6, 0
P_R:
    s_nop 4
    v_readlane_b32 s11, v4, s6
    v_readlane_b32 s12, v5, s6
    v_readlane_b32 s13, v6, s6
    s_nop 4
    s_add_u32 s8, s8, s11
    s_max_u32 s9, s9, s12
    s_min_u32 s10, s10, s13
    s_add_u32 s6, s6, 1
    s_cmp_lt_u32 s6, 64
    s_cbranch_scc1 P_R
"""
    if what in ('span', 'skew'): b += "    s_sub_u32 s8, s9, s10\n    s_mul_i32 s8, s8, 10\n"
    elif what == 'gapend': b += "    s_sub_u32 s8, s20, s9\n    s_mul_i32 s8, s8, 10\n"
    elif what == 'pdur': b += "    s_memrealtime s[22:23]\n    s_waitcnt lgkmcnt(0)\n    s_sub_u32 s8, s22, s20\n    s_mul_i32 s8, s8, 10\n"
    elif what == 'gapstart': b += f"    v_mov_b32 v1, {20<<20}\n    global_load_dword v2, v1, s[4:5]\n    s_waitcnt vmcnt(0)\n    v_readfirstlane_b32 s9, v2\n    s_nop 4\n    s_sub_u32 s8, s10, s9\n    s_mul_i32 s8, s8, 10\n"
    elif what in ('none', 'none2'): b += "    s_mov_b32 s8, 0\n"
    else: b += "    s_lshr_b32 s8, s8, 7\n    s_mul_hi_u32 s8, s8, 613566757\n"
    b += """
    s_min_u32 s8, s8, 200000
    s_memrealtime s[14:15]
    s_waitcnt lgkmcnt(0)
P_S:
    s_memrealtime s[16:17]
    s_waitcnt lgkmcnt(0)
    s_sub_u32 s16, s16, s14
    s_cmp_lt_u32 s16, s8
    s_cbranch_scc1 P_S
P_END:
    s_endpgm
"""
    return b
main_line = f"; @launch kernel={NAME} grid=(256,1,1) block=(256,1,1) lds=163840"
p_line = "; @launch kernel=probe_kernel grid=(1,1,1) block=(64,1,1) lds=0"
lead = f'''
.globl lead_kernel
.p2align 8
.type lead_kernel,@function
lead_kernel:
    s_cmp_ge_u32 s2, 1
    s_cbranch_scc1 Q_END
    s_load_dwordx2 s[4:5], s[0:1], 120
    v_mov_b32 v1, {20<<20}
    s_waitcnt lgkmcnt(0)
    s_memrealtime s[6:7]
    s_waitcnt lgkmcnt(0)
    v_mov_b32 v2, s6
    global_store_dword v1, v2, s[4:5]
Q_END:
    s_endpgm
'''
l_line = "; @launch kernel=lead_kernel grid=(1,1,1) block=(64,1,1) lds=0"
for what in sys.argv[2:]:
    t = src.replace("; Override launch geometry by editing the next line (default: block=256,\n; grid=ceil(out_elems/256), lds=0). Harness parses it; keep it on one line.\n", "")
    wl = what in ('gapstart', 'none2')
    t = re.sub(r'; @launch grid.*', (l_line + '\n' if wl else '') + main_line + '\n' + p_line, t)
    t = t.replace('.section .rodata,"a"', probe(what) + lead + '.section .rodata,"a"') + kd + kd.replace('probe_kernel', 'lead_kernel')
    open(f'p_{what}.s', 'w').write(t)
```
